```python
import torch

def _softmax(x, axis=-1):
    return torch.softmax(x, dim=axis)
def _gelu(x):
    return torch.nn.functional.gelu(x, approximate="tanh")
def _silu(x):
    return torch.nn.functional.silu(x)
def _sigmoid(x):
    return torch.sigmoid(x)
def _layernorm(x, axis=-1, eps=1e-5):
    m = x.mean(dim=axis, keepdim=True)
    v = x.var(dim=axis, keepdim=True, unbiased=False)
    return (x - m) / torch.sqrt(v + eps)
def _scatter_add(tgt, idx, src, axis=0):
    return tgt.clone().index_add_(axis, idx, src)
def _segment_sum(src, seg, n):
    out = torch.zeros((n,) + src.shape[1:], dtype=src.dtype)
    return out.index_add_(0, seg, src)
def _pad(x, pw):
    flat = tuple(v for pair in reversed(pw) for v in pair)
    return torch.nn.functional.pad(x, flat)

kernel_name = 'standalone__mha_softmax__near_ridge'

def setup_inputs():

    _w = (lambda a: (lambda t: t.to(torch.bfloat16) if t.is_floating_point() else t)(torch.as_tensor(a)))
    B, H, Sq, Sk, D = 16, 32, 848, 512, 128
    return {
        "q": _w((lambda *s: torch.randn(*s, dtype=torch.bfloat16) * 0.8)(B, H, Sq, D)),
        "k": _w((lambda *s: torch.randn(*s, dtype=torch.bfloat16) * 0.8)(B, H, Sk, D)),
        "v": _w((lambda *s: torch.randn(*s, dtype=torch.bfloat16) * 0.05)(B, H, Sk, D)),
    }

def reference(q, k, v):
    scale = q.shape[-1] ** -0.5
    scores = torch.einsum("bhqd,bhkd->bhqk", q, k) * scale
    p = _softmax(scores, axis=-1)
    return torch.einsum("bhqk,bhkd->bhqd", p, v)
```

```python
INF = 10 ** 9


def R(kind, lo, n=1):
    return [f"{kind}{lo + k}" for k in range(n)]


def rr(kind, lo, n):
    return f"{kind}{lo}" if n == 1 else f"{kind}[{lo}:{lo + n - 1}]"


class Op:
    def __init__(s, txt, kind, rd=(), wr=(), rdC=(), rel=-INF, dl=INF, pin=None, sub=None, states=1,
                 vm_need=None, lg_need=None, extraN=None, name=None):
        s.txt, s.kind = txt, kind
        s.rd, s.wr, s.rdC = list(rd), list(wr), list(rdC)
        s.rel, s.dl, s.pin, s.sub, s.states = rel, dl, pin, sub, states
        s.vm_need, s.lg_need, s.extraN, s.name = vm_need, lg_need, extraN, name
        s.preds, s.succs = set(), set()
        s.done = False
        s.mi = None
        s.slots = {"M": 0, "V": 1, "P": 1, "E": 2, "D": 1, "G": 1, "S": 0}[kind]


class Emitter:
    def __init__(s):
        s.lines = []
        s.pos = 0
        s.mw, s.vw, s.ew, s.mc, s.st, s.sw = {}, {}, {}, {}, {}, {}
        s.ds = []
        s.vm = []
        s.vm_done = 0
        s.nops = 0
        s.cyc = 0
        s.gapslots = 0

    def pad(s, op):
        need = 0

        def req(tab, regs, ws):
            nonlocal need
            for r in regs:
                if r in tab:
                    need = max(need, ws - (s.pos - tab[r] - 1))
        k = op.kind
        if k == "M":
            req(s.mw, op.rd, 8)
            req(s.vw, op.rd + op.rdC, 2)
            req(s.vw, op.wr, 2)
        elif k in "VPE":
            req(s.mw, op.rd + op.wr, 8)
            req(s.mc, op.wr, 3)
            req(s.st, op.wr, 2)
            if k != "E":
                req(s.ew, op.rd, 1)
            if k == "P":
                req(s.vw, op.rd, 2)
            req(s.sw, [r for r in op.rd if r[0] == "s" or r == "vcc"], 2)
        elif k in "DG":
            req(s.mw, op.rd + op.wr, 8)
            req(s.mc, op.wr, 3)
            req(s.ew, op.rd, 1)
            req(s.st, op.wr, 2)
            if op.sub == "dma":
                req(s.sw, ["m0"], 1)
            req(s.sw, [r for r in op.rd if r[0] == "s" and ("V", r) in s.sw], 5)
        elif k == "S":
            req(s.sw, [("V", r) for r in op.rd], 4)
        return need

    def raw(s, txt, states=1):
        s.lines.append("    " + txt)
        s.pos += states

    def label(s, name):
        s.lines.append(name + ":")

    def comment(s, t):
        s.lines.append("    ; " + t)

    def nop(s, n):
        s.nops += n
        while n > 0:
            k = min(n, 16)
            s.raw(f"s_nop {k - 1}", k)
            s.gapslots += k
            n -= k

    def lg_count(s, ops):
        idx = [i for i, d in enumerate(s.ds) if d in ops]
        if not idx:
            return None
        return min(15, len(s.ds) - 1 - max(idx))

    def wait(s, vm=None, lg=None):
        parts = []
        if vm is not None:
            parts.append(f"vmcnt({min(vm, 63)})")
            s.vm_done = max(s.vm_done, len(s.vm) - min(vm, 63))
        if lg is not None:
            parts.append(f"lgkmcnt({lg})")
            s.ds = s.ds[len(s.ds) - lg:] if lg else []
        if parts:
            s.raw("s_waitcnt " + " ".join(parts))
            return True
        return False

    def ds_deps(s, op):
        regs = set(op.rd + op.wr + op.rdC)
        return [d for d in s.ds if regs & set(d.wr)]

    def emit(s, op):
        dd = s.ds_deps(op) if op.kind != "D" else []
        if dd:
            s.wait(lg=s.lg_count(dd))
            s.gapslots += 1
        n = s.pad(op)
        if n > 0:
            s.nop(n)
        if op.sub == "wait":
            vm = None
            if op.vm_need is not None or op.extraN is not None:
                cand = []
                if op.vm_need:
                    last = max(s.vm.index(g) for g in op.vm_need)
                    if last >= s.vm_done:
                        cand.append(len(s.vm) - 1 - last)
                if op.extraN is not None:
                    cand.append(len(s.vm) + op.extraN)
                vm = min(cand) if cand else None
            lg = s.lg_count(op.lg_need) if op.lg_need else None
            s.wait(vm, lg)
        elif op.sub == "firstwait":
            n_ = len(s.vm) + op.extraN
            for t in op.txt.format(n=min(n_, 63)).split("\n"):
                if t.endswith(":"):
                    s.label(t[:-1])
                else:
                    s.lines.append("    " + t)
            s.pos += op.states
        else:
            for t in op.txt.split("\n"):
                s.lines.append("    " + t)
            s.pos += op.states
        p = s.pos - 1
        k = op.kind
        for r in op.wr:
            for tab in (s.mw, s.vw, s.ew):
                tab.pop(r, None)
            s.sw.pop(("V", r), None)
        if k == "M":
            for r in op.wr: s.mw[r] = p
            for r in op.rdC: s.mc[r] = p
            s.cyc += max(16, 8 + 4 * s.gapslots)
            s.gapslots = 0
        elif k in "VPE":
            for r in op.wr:
                if r[0] == "s" or r == "vcc":
                    s.sw[r] = p
                    s.sw[("V", r)] = p
                else:
                    s.vw[r] = p
                    if k == "E": s.ew[r] = p
        elif k == "D":
            s.ds.append(op)
        elif k == "G":
            s.vm.append(op)
            if op.sub == "store":
                for r in op.rd: s.st[r] = p
        elif k == "S":
            for r in op.wr:
                if r == "m0": s.sw["m0"] = p
                else: s.sw.pop(r, None)
        s.gapslots += op.slots
        op.done = True


def build_deps(ops):
    lastw, readers = {}, {}
    for op in ops:
        rds = op.rd + op.rdC
        for r in rds:
            if r in lastw: op.preds.add(lastw[r])
        for r in op.wr:
            if r in lastw: op.preds.add(lastw[r])
            for q in readers.get(r, ()):
                if q is not op: op.preds.add(q)
        for r in rds:
            readers.setdefault(r, []).append(op)
        for r in op.wr:
            lastw[r] = op
            readers[r] = []
        for g in (op.vm_need or []): op.preds.add(g)
        for g in (op.lg_need or []): op.preds.add(g)
    for op in ops:
        for p in op.preds: p.succs.add(op)


def schedule(ops, em, LAT_D=8, trace=None):
    build_deps(ops)
    spine = [o for o in ops if o.kind == "M"]
    for i, m in enumerate(spine): m.mi = i
    order = {id(o): i for i, o in enumerate(ops)}
    M = len(spine)
    for op in reversed(ops):
        if op.kind == "M": continue
        dl = op.dl
        if op.pin is not None: dl = min(dl, op.pin)
        for x in op.succs:
            raw = set(op.wr) & set(x.rd + x.rdC)
            if x.kind == "M":
                if op.kind == "D" and raw: d = x.mi - 1 - LAT_D
                elif op.kind in "VPE" and raw: d = x.mi - 2
                else: d = x.mi - 1
            else:
                if op.kind == "D" and x.lg_need and op in x.lg_need: d = x.dl - LAT_D
                elif op.kind == "S": d = x.dl - 1
                else: d = x.dl - 0.5 * op.slots
            dl = min(dl, d)
        op.dl = dl
    pend = [o for o in ops if o.kind != "M"]

    def ready(o):
        return all(p.done for p in o.preds)

    def force(o):
        for p in sorted(o.preds, key=lambda x: order[id(x)]):
            if not p.done:
                assert p.kind != "M", (o.txt, p.txt)
                force(p)
                em.emit(p)

    def cands(g, scalar):
        c = [o for o in pend if not o.done and (o.kind == "S") == scalar and o.rel <= g
             and (o.pin is None or o.pin <= g) and ready(o) and em.pad(o) == 0]
        c.sort(key=lambda o: (o.dl, order[id(o)]))
        return c

    for g in range(M):
        m = spine[g]
        force(m)
        em.emit(m)
        pend = [o for o in pend if not o.done]
        used = False
        pinned = [o for o in pend if o.pin == g]
        nxt = spine[g + 1] if g + 1 < M else None
        dd = em.ds_deps(nxt) if nxt is not None else []
        for o in pinned:
            if o.sub == "wait" and dd:
                o.lg_need = list(o.lg_need or []) + dd
                dd = []
            force(o)
            if used: em.gapslots += 1
            em.emit(o)
            used = True
        if dd:
            if used: em.gapslots += 1
            em.wait(lg=em.lg_count(dd))
            used = True
        if not used:
            c = [o for o in cands(g, True) if o.pin is None]
            if c: em.emit(c[0])
        c = cands(g, False)
        Es = [o for o in c if o.kind == "E"]
        Ns = [o for o in c if o.kind != "E"]
        if Es and (not Ns or Es[0].dl <= Ns[0].dl or (len(Ns) < 2 and Ns[0].dl > g + 1)):
            em.emit(Es[0])
        elif Ns:
            pick = Ns[:2]
            pick.sort(key=lambda o: 0 if o.kind in "DG" else 1)
            em.emit(pick[0])
            if len(pick) > 1 and em.pad(pick[1]) == 0:
                em.emit(pick[1])
            else:
                c2 = [o for o in cands(g, False) if o.kind in "VP"]
                if c2: em.emit(c2[0])
        while True:
            c = [o for o in cands(g, False) + cands(g, True) if o.dl <= g and o.pin is None]
            if not c: break
            c.sort(key=lambda o: (o.dl, order[id(o)]))
            if c[0].kind == "S": em.gapslots += 1
            em.emit(c[0])
        if trace is not None: trace.append((g, em.gapslots))
    pend = [o for o in pend if not o.done]
    while pend:
        c = [o for o in pend if ready(o)]
        c.sort(key=lambda o: (em.pad(o) > 0, o.dl, order[id(o)]))
        if c[0].kind == "S": em.gapslots += 1
        em.emit(c[0])
        pend = [o for o in pend if not o.done]
    em.cyc += 4 * em.gapslots
    em.gapslots = 0
```

```python
import sys
from sched import Op, Emitter, schedule, R, rr, INF

KN = "standalone__mha_softmax__near_ridge_kernel"
QBYTES, KBYTES = 111149056, 67108864
HEADQ, HEADK = 217088, 131072
VRING, VSLOT = 65536, 16416
LDS = VRING + 4 * VSLOT
CSC = 0x3e0293ee
THR = 0x4e800000
OOBQ, OOBK = 0x7000000, 0x4000000

DEF = dict(pf=1, q_nt=0, o_nt=0, kv_nt=0, stamps=0, lat=8, vpad=8, force_slow=0, qspace=4, pk=0)

SQ, SK, SV, SO = 4, 8, 12, 16
sC, sW, sLK, sLV, sN, sJ, sX = 20, 21, 22, 23, 24, 25, 26
sKVc, sKVn, sQc, sQn, sNT = 27, 28, 29, 30, 31
sQt = 32
sTK, sTV = 37, 38
sThr = 39
sOt = 40
sFlag = 45
sR0 = 46
sNT2 = 49
sT = 52
sPF = 60
sBit = 63
sSt = 64

def O(t, i): return ("v", (i * 8 + t) * 4) if i < 4 else ("a", t * 4)
def P(b, i, kk): return ("v", 128 + b * 40 + i * 8 + kk * 4)
def S(i): return ("v", 208 + 4 * i)
def MC(i): return 228 + i
def RC(i): return 233 + i
vKA, vVA, vDK, vDV, vQO, vPF, vPF2, vCHK = 238, 242, 246, 247, 248, 249, 250, 251
def Q(i, ks): return ("a", 32 + 16 * i + 4 * ks)
def L(i): return ("a", 112 + 4 * i)
ONES = ("a", 132)
def KF(b, ks): return ("a", 136 + 16 * b + 4 * ks)
def VF(b, kk): return ("a", 200 + 8 * b + 4 * kk)
aDUM = 216
NAGPR = 224


def mfma(d, a, b, c0=False, extra=()):
    c = "0" if c0 else rr(*d, 4)
    return Op(f"v_mfma_f32_16x16x32_bf16 {rr(*d, 4)}, {rr(*a, 4)}, {rr(*b, 4)}, {c}", "M",
              rd=R(*a, 4) + R(*b, 4) + list(extra), wr=R(*d, 4), rdC=[] if c0 else R(*d, 4))


def sop(txt, rd, wr, **kw):
    f = lambda x: x if isinstance(x, str) else f"s{x}"
    return Op(txt, "S", rd=[f(x) for x in rd], wr=[f(x) for x in wr], **kw)


def params_ops(nreg, nadd):
    t0, t1, t2, t3 = sT, sT + 1, sT + 2, sT + 3
    return [
        (f"s_add_u32 s{t3}, s{nreg}, {nadd}", [nreg], [t3, "scc"]),
        (f"s_lshl_b32 s{t0}, s{t3}, 5", [t3], [t0, "scc"]),
        (f"s_add_u32 s{t0}, s{t0}, s{sJ}", [t0, sJ], [t0, "scc"]),
        (f"s_mul_i32 s{t1}, s{t0}, 43691", [t0], [t1]),
        (f"s_lshr_b32 s{t1}, s{t1}, 17", [t1], [t1, "scc"]),
        (f"s_mul_i32 s{t2}, s{t1}, 3", [t1], [t2]),
        (f"s_sub_u32 s{t2}, s{t0}, s{t2}", [t0, t2], [t2, "scc"]),
        (f"s_lshl_b32 s{t1}, s{t1}, 3", [t1], [t1, "scc"]),
        (f"s_add_u32 s{t1}, s{t1}, s{sX}", [t1, sX], [t1, "scc"]),
        (f"s_lshl_b32 s{sKVn}, s{t1}, 17", [t1], [sKVn, "scc"]),
        (f"s_mul_i32 s{t1}, s{t1}, {HEADQ}", [t1], [t1]),
        (f"s_cmp_eq_u32 s{t2}, 0", [t2], ["scc"]),
        (f"s_cselect_b32 s{t0}, s{sR0}, s{sR0 + 1}", [sR0, sR0 + 1, "scc"], [t0]),
        (f"s_cselect_b32 s{sNT}, 1, 0", ["scc"], [sNT]),
        (f"s_cmp_eq_u32 s{t2}, 2", [t2], ["scc"]),
        (f"s_cselect_b32 s{t0}, s{sR0 + 2}, s{t0}", [sR0 + 2, t0, "scc"], [t0]),
        (f"s_cselect_b32 s{sNT}, s{sNT2}, s{sNT}", [sNT2, sNT, "scc"], [sNT]),
        (f"s_add_u32 s{sQn}, s{t1}, s{t0}", [t1, t0], [sQn, "scc"]),
        (f"s_cmp_ge_u32 s{t3}, 6", [t3], ["scc"]),
        (f"s_cselect_b32 s{sKVn}, {OOBK}, s{sKVn}", [sKVn, "scc"], [sKVn]),
        (f"s_cselect_b32 s{sQn}, {OOBQ}, s{sQn}", [sQn, "scc"], [sQn]),
    ]


def qtile_ops():
    o = [(f"s_mov_b32 s{sQt}, s{sQn}", [sQn], [sQt])]
    for i in range(1, 5):
        o.append((f"s_add_u32 s{sQt + i}, s{sQn}, {4096 * i}", [sQn], [sQt + i, "scc"]))
    o.append((f"s_cmp_eq_u32 s{sNT}, 0", [sNT], ["scc"]))
    o.append((f"s_cselect_b32 s{sQt + 4}, {OOBQ}, s{sQt + 4}", [sQt + 4, "scc"], [sQt + 4]))
    return o


class Gen:
    def __init__(s, **kw):
        s.o = dict(DEF); s.o.update(kw)
        s.qafter = None

    def kread(s, tile, kt, b):
        return [Op(f"ds_read_b128 {rr(*KF(b, ks), 4)}, v{vKA + ks} offset:{(tile % 4) * 16384 + kt * 1024}", "D",
                   rd=[f"v{vKA + ks}", f"K{tile % 4}"], wr=R(*KF(b, ks), 4)) for ks in range(4)]

    def vread(s, tile, t):
        out = []
        for kk in range(2):
            for h in range(2):
                k, lo = VF(t & 1, kk)
                out.append(Op(f"ds_read_b64_tr_b16 {rr(k, lo + 2 * h, 2)}, v{vVA + (t >> 1)} "
                              f"offset:{(tile % 4) * VSLOT + kk * 2048 + h * 1024 + 8 * (t & 1)}", "D",
                              rd=[f"v{vVA + (t >> 1)}", f"V{tile % 4}"], wr=R(k, lo + 2 * h, 2)))
        return out

    def dma(s, isv, tile, nxt, rel0=-INF, step=0, gate=None):
        base = sKVn if nxt else sKVc
        st = sTV if isv else sTK
        lb, slot = (sLV, VSLOT) if isv else (sLK, 16384)
        srd = SV if isv else SK
        va = vDV if isv else vDK
        nt = " nt" if s.o["kv_nt"] else ""
        g = [gate] if gate else []
        ops = [sop(f"s_add_u32 s{st}, s{base}, {(tile % 8) * 16384}", [base] + g, [st, "scc"], rel=rel0 - 3),
               sop(f"s_add_u32 m0, s{lb}, {(tile % 4) * slot}", [lb] + g, ["m0", "scc"], rel=rel0 - 2)]
        for j in range(4):
            r = rel0 + j * step
            ops.append(Op(f"buffer_load_dwordx4 v{va}, s[{srd}:{srd + 3}], s{st} offen offset:{j * 1024}{nt} lds", "G",
                          rd=[f"v{va}", f"s{st}", "m0", "VMORD"] + g, wr=["VMORD"], sub="dma",
                          rel=r, dl=(r + max(step, 2) if step else INF)))
        return ops

    def qload(s, i, **kw):
        nt = " nt" if s.o["q_nt"] else ""
        return [Op(f"buffer_load_dwordx4 {rr(*Q(i, ks), 4)}, v{vQO}, s[{SQ}:{SQ + 3}], s{sQt + i} offen offset:{ks * 64}{nt}",
                   "G", rd=[f"v{vQO}", f"s{sQt + i}", "VMORD"], wr=R(*Q(i, ks), 4) + ["VMORD"], sub="load", name=("q", i), **kw)
                for ks in range(4)]

    def softmax(s, sb, i, kt, pb):
        k, lo = S(sb)
        ops = []
        for j in range(4):
            ops.append(Op(f"v_fma_f32 v{lo + j}, v{lo + j}, s{sC}, v{MC(i)}", "V", rd=[f"v{lo + j}", f"v{MC(i)}"], wr=[f"v{lo + j}"]))
        for j in range(4):
            ops.append(Op(f"v_exp_f32 v{lo + j}, v{lo + j}", "E", rd=[f"v{lo + j}"], wr=[f"v{lo + j}"]))
        _, p = P(pb, i, kt >> 1)
        p += 2 * (kt & 1)
        for j in range(2):
            ops.append(Op(f"v_cvt_pk_bf16_f32 v{p + j}, v{lo + 2 * j}, v{lo + 2 * j + 1}", "V",
                          rd=R("v", lo + 2 * j, 2), wr=[f"v{p + j}"]))
        return ops

    def rowmax(s, sb, i):
        _, lo = S(sb)
        _, x = P(1, i, 0)
        y = x + 1
        V = lambda t, rd, wr, k="V": Op(t, k, rd=[f"v{a}" for a in rd], wr=[f"v{a}" for a in wr])
        return [V(f"v_max3_f32 v{y}, v{lo}, v{lo + 1}, v{lo + 2}", [lo, lo + 1, lo + 2], [y]),
                V(f"v_max_f32 v{x}, v{y}, v{lo + 3}", [y, lo + 3], [x]),
                V(f"v_max_f32 v{y}, v{y}, v{lo + 3}", [y, lo + 3], [y]),
                V(f"v_permlane32_swap_b32 v{x}, v{y}", [x, y], [x, y], "P"),
                V(f"v_max_f32 v{x + 2}, v{x}, v{y}", [x, y], [x + 2]),
                V(f"v_max_f32 v{x + 3}, v{x}, v{y}", [x, y], [x + 3]),
                V(f"v_permlane16_swap_b32 v{x + 2}, v{x + 3}", [x + 2, x + 3], [x + 2, x + 3], "P"),
                V(f"v_max_f32 v{x}, v{x + 2}, v{x + 3}", [x + 2, x + 3], [x]),
                V(f"v_mul_f32_e64 v{MC(i)}, -s{sC}, v{x}", [x], [MC(i)])]

    def stamp(s, k, g):
        if not s.o["stamps"]: return []
        return [Op(f"s_memtime s[{sT + 6}:{sT + 7}]\n    s_lshl_b32 m0, s{sN}, 1\n    s_waitcnt lgkmcnt(15)", "S", pin=g)]

    def block(s, NT, em):
        o = s.o
        ops = []
        nm = [0]

        rdlist = {}

        def add(x):
            for op in (x if isinstance(x, list) else [x]):
                if op.kind == "M": nm[0] += 1
                if op.kind == "D": rdlist.setdefault(op.rd[1], []).append(op)
                ops.append(op)

        def qk_chain(kb, i, sb, rev, extra=()):
            order = [3, 2, 1, 0] if rev else [0, 1, 2, 3]
            for n, ks in enumerate(order):
                add(mfma(S(sb), KF(kb, ks), Q(i, ks), c0=(n == 0), extra=extra))

        def pv_chain(t, i, pb, first):
            order = [1, 0] if i & 1 else [0, 1]
            for n, kk in enumerate(order):
                add(mfma(O(t, i), VF(t & 1, kk), P(pb, i, kk), c0=(first and n == 0)))

        def sum_chain(i, pb, first):
            for kk in range(2):
                add(mfma(L(i), ONES, P(pb, i, kk), c0=(first and kk == 0)))

        batches = {}

        def barrier(j, old_reads, pin, first_extra=None):
            need = batches.get((j - 3) % 8) if j in (1, 2, 3, 4, 5, 6) else None
            old_reads = rdlist.pop(f"K{(j + 1) % 4}", []) + rdlist.pop(f"V{j % 4}", [])
            add(Op("", "S", sub="wait", vm_need=need, lg_need=old_reads, pin=pin, wr=["BARW"]))
            if first_extra is not None:
                add(Op(f"s_cmp_lg_u32 s{sN}, 0\ns_cbranch_scc1 Lfw{NT}_{j}\ns_waitcnt vmcnt({{n}})\nLfw{NT}_{j}:", "S",
                       sub="firstwait", extraN=first_extra, states=2, rd=["BARW", f"s{sN}"], wr=["BARW", "scc"], pin=pin))
            add(Op("s_barrier", "S", rd=["BARW"], pin=pin + 1,
                   wr=[f"K{(j + 1) % 4}", f"K{(j + 2) % 4}", f"V{j % 4}", f"V{(j + 1) % 4}", f"FREE{j}"]))

        def batch(j, rel0, step):
            kt_, vt_ = (j + 5) % 8, (j + 4) % 8
            gate = f"FREE{j}" if j != 6 else None
            a = s.dma(False, kt_, j in (3, 4, 5), rel0, step, gate)
            b = s.dma(True, vt_, j in (4, 5), rel0 + 4 * step, step, gate)
            batches[j] = [x for x in a + b if x.kind == "G"]
            add(a); add(b)

        PER = 34 * NT
        step_sp = (PER - 10) // 8
        batch(6, 0, 3)
        for t, rd, wr in params_ops(sN, 1) + qtile_ops():
            add(sop(t, rd, wr, rel=0, dl=16 * NT + 2 * PER))
        for i in range(NT):
            add(sop(f"s_add_u32 s{sOt + i}, s{sQc}, {4096 * i}", [sQc], [sOt + i, "scc"], rel=0, dl=16 * NT + 2 * PER))
        add(sop(f"s_lshl_b32 s{sBit}, 1, s{sN}", [sN], [sBit, "scc"], rel=0, dl=16 * NT + 2 * PER))
        add(sop(f"s_mov_b32 s{sQc}, s{sQn}", [sQn], [sQc], rel=0, dl=16 * NT + 2 * PER))
        n = 0
        for i in range(NT):
            qa = s.qafter[i] if s.qafter else 0
            add(Op("", "S", sub="wait", extraN=qa, wr=[f"QOK{i}"], pin=(nm[0] - 1 if i else None)))
            if i == NT - 1:
                barrier(7, [], nm[0] - 6, first_extra=8)
            for kt in range(4):
                sb = n % NT
                qk_chain(kt, i, sb, kt & 1, extra=[f"QOK{i}"])
                if kt == 0: add(s.rowmax(sb, i))
                add(s.softmax(sb, i, kt, 0))
                if i == NT - 1 and kt == 0: add(s.kread(1, 0, 0))
                if i == NT - 1 and kt == 1: add(s.kread(1, 1, 1))
                n += 1
        add(s.vread(0, 0)); add(s.vread(0, 1))
        batch(7, nm[0] - 8, step_sp)
        for j in range(7):
            pb = j & 1
            kr, vr = [], []
            for kt in range(4):
                for i in range(NT):
                    qk_chain(kt & 1, i, i, i & 1)
                    add(s.softmax(i, i, kt, 1 - pb))
                if kt < 2:
                    kr = s.kread(j + 1, kt + 2, kt & 1); add(kr)
                if kt == 3:
                    barrier(j, kr + vr, nm[0] - 1, first_extra=(0 if j == 0 else None))
                    if j < 6:
                        add(s.kread(j + 2, 0, 0)); add(s.kread(j + 2, 1, 1))
                        batch(j, nm[0] + 2, step_sp)
                    if j == 3 and o["pf"]:
                        for m in range(3):
                            add(sop(f"s_add_u32 s{sPF + m}, s{sQn}, {8192 * m}" if m < 2 else f"s_mov_b32 s{sPF + 2}, s{sQt + 4}",
                                    [sQn, sQt + 4], [sPF + m, "scc"]))
                            r = nm[0] + 2 + step_sp // 2 + m * step_sp
                            va = vPF if m < 2 else vPF2
                            add(Op(f"buffer_load_dword a{aDUM}, v{va}, s[{SQ}:{SQ + 3}], s{sPF + m} offen", "G",
                                   rd=[f"v{va}", f"s{sPF + m}"], wr=[f"a{aDUM}"], sub="load", rel=r, dl=r + 4))
                for t in (2 * kt, 2 * kt + 1):
                    for i in range(NT): pv_chain(t, i, pb, j == 0)
                    if t < 6:
                        vr = s.vread(j, t + 2); add(vr)
                    else:
                        add(s.vread(j + 1, t - 6))
                for i in range(NT):
                    if i % 4 == kt: sum_chain(i, pb, j == 0)
        a0 = nm[0]
        add(sop(f"s_mov_b32 s{sKVc}, s{sKVn}", [sKVn], [sKVc], rel=a0))
        for kt in range(4):
            x = s.kread(8, kt, kt)
            for k, y in enumerate(x): y.dl = 90000; y.rel = a0 + 6 + 4 * kt + k
            add(x)
        qops = []
        qs = o["qspace"]
        ql = []
        for i in range(5): ql += s.qload(i)
        for k, x in enumerate(ql):
            x.rel = a0 - 2 * NT + k * qs * NT // 5; x.dl = x.rel + 3
            x.rd.remove("VMORD"); x.wr.remove("VMORD"); x.rd.append("QORD"); x.wr.append("QORD")
        add(ql)
        onts = " nt" if o["o_nt"] == 1 else (" sc0 sc1" if o["o_nt"] == 2 else (" sc1" if o["o_nt"] == 3 else ""))
        for t in range(8):
            for i in range(NT): pv_chain(t, i, 1, False)
            if t < 6: add(s.vread(7, t + 2))
            if t == 0:
                for i in range(NT): sum_chain(i, 1, False)
                for i in range(NT):
                    lo = S(i)[1]
                    add(Op(f"v_accvgpr_read_b32 v{lo}, a{L(i)[1]}", "V", rd=[f"a{L(i)[1]}"], wr=[f"v{lo}"]))
                    add(Op(f"v_rcp_f32 v{RC(i)}, v{lo}", "E", rd=[f"v{lo}"], wr=[f"v{RC(i)}"]))
                for i in range(NT):
                    lo = S(i)[1]
                    if i == 0:
                        add(Op(f"v_add_f32 v{vCHK}, v{lo}, v{RC(i)}", "V", rd=[f"v{lo}", f"v{RC(i)}"], wr=[f"v{vCHK}"]))
                    else:
                        add(Op(f"v_add_f32 v{vCHK}, v{lo}, v{vCHK}", "V", rd=[f"v{lo}", f"v{vCHK}"], wr=[f"v{vCHK}"]))
                        add(Op(f"v_add_f32 v{vCHK}, v{RC(i)}, v{vCHK}", "V", rd=[f"v{RC(i)}", f"v{vCHK}"], wr=[f"v{vCHK}"]))
                add(Op(f"v_cmp_ngt_f32 vcc, s{sThr}, v{vCHK}", "V", rd=[f"v{vCHK}"], wr=["vcc"]))
                add(sop("s_cmp_lg_u64 vcc, 0", ["vcc"], ["scc"]))
                add(sop(f"s_cselect_b32 s{sBit}, s{sBit}, 0", [sBit, "scc"], [sBit]))
                add(sop(f"s_or_b32 s{sFlag}, s{sFlag}, s{sBit}", [sBit, sFlag], [sFlag, "scc"], dl=100030))
            if t & 1:
                tp = t >> 1
                for i in range(NT):
                    (k0, e), (k1, d) = O(t - 1, i), O(t, i)
                    src = R(k0, e, 4) + R(k1, d, 4)
                    if k0 == "a":
                        tmp = P(0, 0, 0)[1] + 8 * tp
                        regs = [tmp + x for x in range(8)]
                        for a_, v_ in zip(src, regs):
                            add(Op(f"v_accvgpr_read_b32 v{v_}, {a_}", "V", rd=[a_], wr=[f"v{v_}"]))
                    else:
                        regs = [e + x for x in range(4)] + [d + x for x in range(4)]
                    for v_ in regs:
                        add(Op(f"v_mul_f32 v{v_}, v{RC(i)}, v{v_}", "V", rd=[f"v{v_}", f"v{RC(i)}"], wr=[f"v{v_}"]))
                    for x in range(4):
                        add(Op(f"v_cvt_pk_bf16_f32 v{regs[x]}, v{regs[2 * x]}, v{regs[2 * x + 1]}", "V",
                               rd=[f"v{regs[2 * x]}", f"v{regs[2 * x + 1]}"], wr=[f"v{regs[x]}"]))
                    add(Op(f"buffer_store_dwordx4 v[{regs[0]}:{regs[0] + 3}], v{vQO}, s[{SO}:{SO + 3}], s{sOt + i} offen offset:{tp * 64}{onts}",
                           "G", rd=R("v", regs[0], 4) + [f"v{vQO}", f"s{sOt + i}"], sub="store", dl=100000 + 20 * (tp * NT + i)))
        add(sop(f"s_add_u32 s{sN}, s{sN}, 1", [sN], [sN, "scc"], rel=a0))
        trace = []
        v0 = len(em.vm)
        schedule(ops, em, LAT_D=o["lat"], trace=trace)
        em.wait(lg=0)
        firstq = min(k for k, g in enumerate(em.vm) if g.name and g.name[0] == "q")
        assert all(em.vm.index(g) < firstq for g in batches[4] + batches[5])
        after = []
        for i in range(5):
            last = max(k for k, g in enumerate(em.vm) if g.name == ("q", i))
            after.append(len(em.vm) - 1 - last)
        return after, trace

    def text(s):
        o = s.o
        A = []
        a = A.append
        a(f"; @launch grid=(256,1,1) block=(256,1,1) lds={LDS}")
        a('.amdgcn_target "amdgcn-amd-amdhsa--gfx950"\n.text')
        a(f".globl {KN}\n.p2align 8\n.type {KN},@function\n{KN}:")
        c = lambda t: a("\n".join("    " + x.strip() for x in t.strip().split("\n")))
        c(f"""
            s_cmp_ge_u32 s2, 256
            s_cbranch_scc1 L_end
            s_load_dwordx4 s[{sT}:{sT + 3}], s[0:1], 0
            s_load_dwordx4 s[{sT + 4}:{sT + 7}], s[0:1], 16
            v_lshrrev_b32 v1, 6, v0
            v_and_b32 v0, 63, v0
            v_readfirstlane_b32 s{sW}, v1
            s_and_b32 s{sX}, s2, 7
            s_lshr_b32 s{sJ}, s2, 3
            s_mov_b32 s{sC}, {CSC:#x}
            s_mov_b32 s{sThr}, {THR if not o['force_slow'] else 0:#x}
            s_mov_b32 s{sFlag}, 0
            s_mov_b32 s{sN}, 0
            s_lshl_b32 s{sLK}, s{sW}, 12
            s_mul_i32 s{sLV}, s{sW}, {4096 + o['vpad']}
            s_add_u32 s{sLV}, s{sLV}, {VRING}
            s_mul_i32 s{sR0}, s{sW}, {80 * 256}
            s_mul_i32 s{sR0 + 1}, s{sW}, {64 * 256}
            s_add_u32 s{sR0 + 2}, s{sR0 + 1}, {(576 + 16) * 256}
            s_add_u32 s{sR0 + 1}, s{sR0 + 1}, {320 * 256}
            s_cmp_eq_u32 s{sW}, 0
            s_cselect_b32 s{sR0 + 2}, {576 * 256}, s{sR0 + 2}
            s_cselect_b32 s{sNT2}, 1, 0
            v_and_b32 v2, 15, v0
            v_lshrrev_b32 v3, 4, v0
            v_lshlrev_b32 v4, 8, v2
            v_lshl_add_u32 v{vQO}, v3, 4, v4
            v_lshlrev_b32 v{vPF}, 7, v0
            v_and_b32 v4, 31, v0
            v_lshlrev_b32 v{vPF2}, 7, v4
            v_lshl_add_u32 v5, v1, 2, v3
            v_xor_b32 v5, v5, v2
            v_lshlrev_b32 v5, 4, v5
            v_lshl_add_u32 v5, v3, 8, v5
            v_lshl_add_u32 v{vDK}, v1, 12, v5
            v_lshlrev_b32 v5, 2, v3
            v_xor_b32 v5, v5, v2
            v_lshlrev_b32 v5, 4, v5
            v_lshl_add_u32 v5, v3, 8, v5
            v_lshl_add_u32 v{vDV}, v1, 12, v5
            s_waitcnt lgkmcnt(0)
            s_mov_b32 s{SQ}, s{sT}
            s_mov_b32 s{SQ + 1}, s{sT + 1}
            s_mov_b32 s{SQ + 2}, {QBYTES}
            s_mov_b32 s{SQ + 3}, 0x20000
            s_mov_b32 s{SK}, s{sT + 2}
            s_mov_b32 s{SK + 1}, s{sT + 3}
            s_mov_b32 s{SK + 2}, {KBYTES}
            s_mov_b32 s{SK + 3}, 0x20000
            s_mov_b32 s{SV}, s{sT + 4}
            s_mov_b32 s{SV + 1}, s{sT + 5}
            s_mov_b32 s{SV + 2}, {KBYTES}
            s_mov_b32 s{SV + 3}, 0x20000
            s_mov_b32 s{SO}, s{sT + 6}
            s_mov_b32 s{SO + 1}, s{sT + 7}
            s_mov_b32 s{SO + 2}, {QBYTES}
            s_mov_b32 s{SO + 3}, 0x20000
        """)
        for t, _, _ in params_ops(sN, 0) + qtile_ops(): c(t)
        c(f"s_mov_b32 s{sKVc}, s{sKVn}\ns_mov_b32 s{sQc}, s{sQn}")
        em = Emitter()
        seq = s.dma(False, 0, False) + s.qload(0)
        for i in range(1, 5): seq += s.qload(i)
        seq += s.dma(False, 1, False) + s.dma(True, 0, False) + s.dma(False, 2, False) + s.dma(True, 1, False)
        for x in seq: em.emit(x)
        A.extend(em.lines)
        c(f"""
            v_lshrrev_b32 v4, 2, v2
            v_and_b32 v5, 3, v2
            v_lshlrev_b32 v6, 12, v4
            v_lshl_add_u32 v6, v5, 8, v6
        """)
        for ks in range(4):
            c(f"v_add_u32 v7, {4 * ks}, v3\nv_xor_b32 v7, v7, v2\nv_lshl_add_u32 v{vKA + ks}, v7, 4, v6")
        c(f"""
            v_mul_u32_u24 v6, {4096 + o['vpad']}, v3
            v_lshl_add_u32 v6, v4, 8, v6
            v_lshl_add_u32 v6, v5, 4, v6
            v_add_u32 v6, {VRING}, v6
        """)
        for tp in range(4):
            c(f"v_xor_b32 v7, {tp}, v4\nv_lshl_add_u32 v{vVA + tp}, v7, 6, v6")
        c("v_mov_b32 v7, 0x3f803f80")
        for k in range(4): c(f"v_accvgpr_write_b32 a{ONES[1] + k}, v7")
        if o["stamps"]:
            c(f"s_memtime s[{sSt}:{sSt + 1}]\ns_memrealtime s[{sSt + 2}:{sSt + 3}]")
        c("s_waitcnt vmcnt(32)\ns_barrier")
        em = Emitter()
        for kt in range(4):
            for x in s.kread(0, kt, kt): em.emit(x)
        A.extend(em.lines)
        c(f"s_waitcnt lgkmcnt(0)\ns_cmp_eq_u32 s{sNT}, 0\ns_cbranch_scc1 L_blk4")
        s.qafter = None
        af = [s.block(NT, Emitter())[0] for NT in (5, 4)]
        s.qafter = [min(af[0][i], af[1][i], 4 * (4 - i) + 16) for i in range(5)]
        s.info = {}
        for NT in (5, 4):
            em = Emitter()
            after, trace = s.block(NT, em)
            s.info[NT] = (em.cyc, em.nops, len(em.lines), after, trace)
            a(".p2align 6")
            a(f"L_blk{NT}:")
            A.extend(em.lines)
            if o["stamps"]:
                c(f"""
                    s_memtime s[{sT + 6}:{sT + 7}]
                    s_mov_b32 m0, s{sN}
                    s_waitcnt lgkmcnt(0)
                    s_movreld_b32 s{sSt + 3}, s{sT + 6}
                """)
            c(f"""
                s_cmp_eq_u32 s{sN}, 6
                s_cbranch_scc1 L_done
                s_cmp_eq_u32 s{sNT}, 0
                s_cbranch_scc1 L_blk4
                s_branch L_blk5
            """)
        a("L_done:")
        if o["stamps"]:
            c(f"""
                s_memrealtime s[{sSt + 10}:{sSt + 11}]
                s_load_dwordx2 s[{sT}:{sT + 1}], s[0:1], 40
                s_waitcnt lgkmcnt(0)
                s_mov_b32 s{sT + 2}, 0x100000
                s_mov_b32 s{sT + 3}, 0x20000
                s_lshl_b32 s{sT + 4}, s2, 2
                s_add_u32 s{sT + 4}, s{sT + 4}, s{sW}
                s_lshl_b32 s{sT + 4}, s{sT + 4}, 6
                v_mov_b32 v1, s{sT + 4}
            """)
            c(f"s_mov_b32 s96, s{sT}\ns_mov_b32 s97, s{sT + 1}\ns_mov_b32 s98, 0x100000\ns_mov_b32 s99, 0x20000")
            for k in range(12):
                c(f"v_mov_b32 v2, s{sSt + k}\nbuffer_store_dword v2, v1, s[96:99], 0 offen offset:{4 * k}")
        c(f"""
            s_waitcnt vmcnt(0)
            s_barrier
            s_cmp_eq_u32 s{sFlag}, 0
            s_cbranch_scc1 L_end
        """)
        s.slow(a, c)
        a("L_end:\n    s_endpgm")
        a(f""".section .rodata,"a"
.p2align 6
.amdhsa_kernel {KN}
  .amdhsa_next_free_vgpr {256 + NAGPR}
  .amdhsa_next_free_sgpr 102
  .amdhsa_accum_offset 256
  .amdhsa_group_segment_fixed_size 0
  .amdhsa_kernarg_size 48
  .amdhsa_user_sgpr_count 2
  .amdhsa_user_sgpr_kernarg_segment_ptr 1
  .amdhsa_system_sgpr_workgroup_id_x 1
  .amdhsa_float_denorm_mode_32 3
.end_amdhsa_kernel""")
        return "\n".join(A) + "\n"

    def slow(s, a, c):
        sI, sKo, sCnt, sRow, sM = sT + 4, sT + 5, sT + 6, sT + 7, sTK
        q, kf, sc, p, vf, oo, ll, on = 0, 16, 48, 56, 60, 64, 96, 100
        m, t0, t1, va, vd = 104, 105, 106, 108, 112
        c(f"""
            v_mbcnt_lo_u32_b32 v{t0}, -1, 0
            v_mbcnt_hi_u32_b32 v{t0}, -1, v{t0}
            v_lshlrev_b32 v{vd}, 4, v{t0}
            v_lshrrev_b32 v{t1}, 2, v{t0}
            v_lshlrev_b32 v{t1}, 8, v{t1}
            v_and_b32 v{t0}, 3, v{t0}
            v_lshl_add_u32 v{t1}, v{t0}, 4, v{t1}
            s_lshl_b32 s{sM}, s{sW}, 13
            v_add_u32 v{va}, s{sM}, v{t1}
            v_mov_b32 v{on}, 0x3f803f80
            v_mov_b32 v{on + 1}, 0x3f803f80
            v_mov_b32 v{on + 2}, 0x3f803f80
            v_mov_b32 v{on + 3}, 0x3f803f80
        """)
        a("L_slow_blk:")
        c(f"s_ff1_i32_b32 s{sN}, s{sFlag}\ns_bitset0_b32 s{sFlag}, s{sN}")
        for t, _, _ in params_ops(sN, 0): c(t)
        c(f"s_add_u32 s{sI}, s{sNT}, 4\ns_mov_b32 s{sRow}, s{sQn}")
        a("L_slow_tile:")
        for ks in range(4):
            c(f"buffer_load_dwordx4 v[{q + 4 * ks}:{q + 4 * ks + 3}], v{vQO}, s[{SQ}:{SQ + 3}], s{sRow} offen offset:{64 * ks}")
        c(f"v_mov_b32 v{m}, 0xff800000\ns_mov_b32 s{sKo}, s{sKVn}\ns_mov_b32 s{sCnt}, 32")
        a("L_slow_p1:")
        for ks in range(4):
            c(f"buffer_load_dwordx4 v[{kf + 4 * ks}:{kf + 4 * ks + 3}], v{vQO}, s[{SK}:{SK + 3}], s{sKo} offen offset:{64 * ks}")
        c("s_waitcnt vmcnt(0)")
        for ks in range(4):
            cc = "0" if ks == 0 else f"v[{sc}:{sc + 3}]"
            c(f"v_mfma_f32_16x16x32_bf16 v[{sc}:{sc + 3}], v[{kf + 4 * ks}:{kf + 4 * ks + 3}], v[{q + 4 * ks}:{q + 4 * ks + 3}], {cc}")
        c(f"""
            s_nop 7
            v_max3_f32 v{m}, v{m}, v{sc}, v{sc + 1}
            v_max3_f32 v{m}, v{m}, v{sc + 2}, v{sc + 3}
            s_add_u32 s{sKo}, s{sKo}, 4096
            s_sub_u32 s{sCnt}, s{sCnt}, 1
            s_cmp_lg_u32 s{sCnt}, 0
            s_cbranch_scc1 L_slow_p1
            v_mov_b32 v{t0}, v{m}
            s_nop 1
            v_permlane32_swap_b32 v{t0}, v{m}
            v_max_f32 v{m}, v{t0}, v{m}
            v_mov_b32 v{t0}, v{m}
            s_nop 1
            v_permlane16_swap_b32 v{t0}, v{m}
            v_max_f32 v{m}, v{t0}, v{m}
        """)
        for k in range(36): c(f"v_mov_b32 v{oo + k}, 0")
        c(f"s_mov_b32 s{sKo}, s{sKVn}\ns_mov_b32 s{sCnt}, 16")
        a("L_slow_p2:")
        for tt in range(2):
            c(f"s_add_u32 s{sTV}, s{sKo}, {4096 * tt}")
            for ks in range(4):
                r = kf + 16 * tt + 4 * ks
                c(f"buffer_load_dwordx4 v[{r}:{r + 3}], v{vQO}, s[{SK}:{SK + 3}], s{sTV} offen offset:{64 * ks}")
            c(f"s_add_u32 m0, s{sM}, {4096 * tt}\ns_nop 0")
            for j in range(4):
                c(f"buffer_load_dwordx4 v{vd}, s[{SV}:{SV + 3}], s{sTV} offen offset:{1024 * j} lds")
        c("s_waitcnt vmcnt(0)")
        for tt in range(2):
            for ks in range(4):
                r = kf + 16 * tt + 4 * ks
                d = sc + 4 * tt
                cc = "0" if ks == 0 else f"v[{d}:{d + 3}]"
                c(f"v_mfma_f32_16x16x32_bf16 v[{d}:{d + 3}], v[{r}:{r + 3}], v[{q + 4 * ks}:{q + 4 * ks + 3}], {cc}")
        c("s_nop 7")
        for k in range(8): c(f"v_sub_f32 v{sc + k}, v{sc + k}, v{m}")
        for k in range(8): c(f"v_mul_f32 v{sc + k}, s{sC}, v{sc + k}")
        for k in range(8): c(f"v_exp_f32 v{sc + k}, v{sc + k}")
        c("s_nop 0")
        for k in range(4): c(f"v_cvt_pk_bf16_f32 v{p + k}, v{sc + 2 * k}, v{sc + 2 * k + 1}")
        c(f"s_nop 1\nv_mfma_f32_16x16x32_bf16 v[{ll}:{ll + 3}], v[{on}:{on + 3}], v[{p}:{p + 3}], v[{ll}:{ll + 3}]")
        for t in range(8):
            for h in range(2):
                c(f"ds_read_b64_tr_b16 v[{vf + 2 * h}:{vf + 2 * h + 1}], v{va} offset:{h * 4096 + (t >> 1) * 64 + 8 * (t & 1)}")
            c("s_waitcnt lgkmcnt(0)")
            c(f"v_mfma_f32_16x16x32_bf16 v[{oo + 4 * t}:{oo + 4 * t + 3}], v[{vf}:{vf + 3}], v[{p}:{p + 3}], v[{oo + 4 * t}:{oo + 4 * t + 3}]")
            c("s_nop 3")
        c(f"""
            s_add_u32 s{sKo}, s{sKo}, 8192
            s_sub_u32 s{sCnt}, s{sCnt}, 1
            s_cmp_lg_u32 s{sCnt}, 0
            s_cbranch_scc1 L_slow_p2
            s_nop 7
            v_rcp_f32 v{t0}, v{ll}
            s_nop 0
        """)
        for k in range(32): c(f"v_mul_f32 v{oo + k}, v{t0}, v{oo + k}")
        for tp in range(4):
            b = oo + 8 * tp
            for x in range(4): c(f"v_cvt_pk_bf16_f32 v{b + x}, v{b + 2 * x}, v{b + 2 * x + 1}")
            c(f"buffer_store_dwordx4 v[{b}:{b + 3}], v{vQO}, s[{SO}:{SO + 3}], s{sRow} offen offset:{64 * tp}")
        c(f"""
            s_waitcnt vmcnt(0)
            s_add_u32 s{sRow}, s{sRow}, 4096
            s_sub_u32 s{sI}, s{sI}, 1
            s_cmp_lg_u32 s{sI}, 0
            s_cbranch_scc1 L_slow_tile
            s_cmp_lg_u32 s{sFlag}, 0
            s_cbranch_scc1 L_slow_blk
        """)


if __name__ == "__main__":
    out = sys.argv[1]
    kw = {}
    for x in sys.argv[2:]:
        k, v = x.split("="); kw[k] = int(v)
    g = Gen(**kw)
    t = g.text()
    open(out, "w").write(t)
    for NT, (cyc, nops, n, after, trace) in g.info.items():
        print(f"NT={NT}: model cycles {cyc}, nops {nops}, lines {n}, qafter {after}")
    print("qafter", g.qafter, "bytes", len(t))
```
